```python
import torch

def _softmax(x, axis=-1):
    return torch.softmax(x, dim=axis)
def _gelu(x):
    return torch.nn.functional.gelu(x, approximate="tanh")
def _silu(x):
    return torch.nn.functional.silu(x)
def _sigmoid(x):
    return torch.sigmoid(x)
def _layernorm(x, axis=-1, eps=1e-5):
    m = x.mean(dim=axis, keepdim=True)
    v = x.var(dim=axis, keepdim=True, unbiased=False)
    return (x - m) / torch.sqrt(v + eps)
def _scatter_add(tgt, idx, src, axis=0):
    return tgt.clone().index_add_(axis, idx, src)
def _segment_sum(src, seg, n):
    out = torch.zeros((n,) + src.shape[1:], dtype=src.dtype)
    return out.index_add_(0, seg, src)
def _pad(x, pw):
    flat = tuple(v for pair in reversed(pw) for v in pair)
    return torch.nn.functional.pad(x, flat)

kernel_name = 'interleave_layers__linear_attn_block__glu_gated_geglu__prompt'

def setup_inputs():

    _w = (lambda a: (lambda t: t.to(torch.bfloat16) if t.is_floating_point() else t)(torch.as_tensor(a)))
    def _A_setup():
        B, S, D = 1, 2048, 512
        return {
            "x": _w((lambda *s: torch.randn(*s, dtype=torch.bfloat16) * 0.05)(B, S, D)),
            "wqkv": _w((lambda *s: torch.randn(*s, dtype=torch.bfloat16) * 0.05)(D, 3 * D)),
            "wo": _w((lambda *s: torch.randn(*s, dtype=torch.bfloat16) * 0.05)(D, D)),
        }
    _A_in = _A_setup()

    def _B_setup():
        B, S, Dm, Df = 1, 2048, 512, 1792
        return {
            "x": _w((lambda *s: torch.randn(*s, dtype=torch.bfloat16) * 0.05)(B, S, Dm)),
            "w_gate": _w((lambda *s: torch.randn(*s, dtype=torch.bfloat16) * 0.8)(Dm, Df) * (Dm ** -0.5)),
            "w_up": _w((lambda *s: torch.randn(*s, dtype=torch.bfloat16) * 0.8)(Dm, Df) * (Dm ** -0.5)),
            "w_down": _w((lambda *s: torch.randn(*s, dtype=torch.bfloat16) * 0.8)(Df, Dm) * (Df ** -0.5)),
        }
    _B_in = _B_setup()

    return {
        "A_x": _A_in["x"],
        "A_wqkv": _A_in["wqkv"],
        "A_wo": _A_in["wo"],
        "B_x": _B_in["x"],
        "B_w_gate": _B_in["w_gate"],
        "B_w_up": _B_in["w_up"],
        "B_w_down": _B_in["w_down"],
    }

def reference(A_x, A_wqkv, A_wo, B_x, B_w_gate, B_w_up, B_w_down):
    def _A_ref(x, wqkv, wo):
        B, S, D = x.shape
        H = 32; Dh = D // H
        qkv = (lambda x, *d: x.permute(*d))((x @ wqkv).reshape(B, S, 3, H, Dh), 2, 0, 3, 1, 4)
        q, k, v = qkv[0], qkv[1], qkv[2]
        phi = lambda t: torch.where(t > 0, t + 1, torch.exp(t)) + 1e-6
        pq, pk = phi(q), phi(k)
        kv = torch.einsum("bhsd,bhse->bhde", pk, v)
        z = torch.einsum("bhsd->bhd", pk)
        num = torch.einsum("bhqd,bhde->bhqe", pq, kv)
        den = torch.einsum("bhqd,bhd->bhq", pq, z)[..., None] + 1e-6
        o = num / den
        return (lambda x, *d: x.permute(*d))(o, 0, 2, 1, 3).reshape(B, S, D) @ wo

    def _B_ref(x, w_gate, w_up, w_down):
        g = torch.einsum("bsd,df->bsf", x, w_gate)
        u = torch.einsum("bsd,df->bsf", x, w_up)
        h = _gelu(g) * u
        return torch.einsum("bsf,fd->bsd", h, w_down)

    x = A_x
    x = x + _A_ref(_layernorm(x, axis=-1), A_wqkv, A_wo)
    x = x + _B_ref(_layernorm(x, axis=-1), B_w_gate, B_w_up, B_w_down)
    x = x + _A_ref(_layernorm(x, axis=-1), A_wqkv, A_wo)
    x = x + _B_ref(_layernorm(x, axis=-1), B_w_gate, B_w_up, B_w_down)
    return x
```

```python
import re

TRANS = ("v_exp_f32", "v_log_f32", "v_rcp_f32", "v_rsq_f32", "v_sqrt_f32", "v_sin_f32", "v_cos_f32", "v_rcp_iflag_f32")
REG_RE = re.compile(r"^(-|abs\()?([vas])(\d+)\)?$")
RNG_RE = re.compile(r"^(-|abs\()?([vas])\[(\d+):(\d+)\]\)?$")

def regs_of(tok):
    tok = tok.strip()
    m = REG_RE.match(tok)
    if m:
        return [(m.group(2), int(m.group(3)))]
    m = RNG_RE.match(tok)
    if m:
        return [(m.group(2), i) for i in range(int(m.group(3)), int(m.group(4)) + 1)]
    if tok in ("vcc", "vcc_lo", "vcc_hi"):
        return [("vcc", 0)]
    if tok in ("exec", "exec_lo", "exec_hi"):
        return [("exec", 0)]
    if tok == "m0":
        return [("m0", 0)]
    return []

class Ins:
    def __init__(self, text):
        self.text = text
        t = text.split(";")[0].strip()
        self.label = None
        self.op = None
        self.w = []; self.r = []
        self.cls = None
        self.passes = 0
        self.srcC = []; self.srcAB = []
        self.store_data = []
        self.states = 1
        if not t or t.startswith("."):
            self.cls = "none"; self.states = 0
            return
        if t.endswith(":"):
            self.label = t[:-1]; self.cls = "label"; self.states = 0
            return
        parts = t.split(None, 1)
        op = parts[0]; self.op = op
        rest = parts[1] if len(parts) > 1 else ""
        ops = []; cur = ""; depth = 0
        for ch in rest:
            if ch in "[(": depth += 1
            if ch in "])": depth -= 1
            if ch == "," and depth == 0:
                ops.append(cur.strip()); cur = ""
            else:
                cur += ch
        if cur.strip(): ops.append(cur.strip())
        mods = []
        if ops:
            sp = ops[-1].split()
            ops[-1] = sp[0]; mods = sp[1:]
        self.ops = ops; self.mods = mods
        R = lambda i: regs_of(ops[i]) if i < len(ops) else []
        if op.startswith("v_mfma"):
            self.cls = "mfma"
            self.passes = 8 if "32x32" in op else 4
            self.w = R(0); self.srcAB = R(1) + R(2); self.srcC = R(3)
            self.r = self.srcAB + self.srcC
        elif op.startswith("v_cmp"):
            self.cls = "valu"; self.w = R(0); self.r = R(1) + R(2)
            if op.startswith("v_cmpx"): self.w = self.w + [("exec", 0)]
        elif op.startswith("v_"):
            self.cls = "valu"
            if op in TRANS or op.replace("_e32", "").replace("_e64", "") in TRANS: self.cls = "trans"
            if op.startswith("v_dot"): self.cls = "dot"
            self.w = R(0)
            self.r = sum((R(i) for i in range(1, len(ops))), [])
            if op.startswith("v_permlane") and "swap" in op:
                self.w = R(0) + R(1); self.r = R(0) + R(1)
            if op.startswith(("v_fmac", "v_dot2c", "v_pk_fmac", "v_mac")):
                self.r = self.r + R(0)
            if op.startswith(("v_add_co", "v_sub_co", "v_addc_co", "v_subb_co", "v_subrev_co")):
                self.w = R(0) + R(1); self.r = sum((R(i) for i in range(2, len(ops))), [])
            if op.startswith("v_cndmask") and len(ops) == 3:
                self.r = self.r + [("vcc", 0)]
            if op.startswith("v_writelane"):
                self.r = self.r + R(0)
        elif op.startswith(("buffer_", "global_", "flat_")):
            self.cls = "vmem"
            lds = "lds" in mods
            if op.startswith("buffer_wbl2") or op.startswith("buffer_inv"):
                pass
            elif op.startswith("buffer_load"):
                if lds:
                    self.r = sum((R(i) for i in range(0, len(ops))), []) + [("m0", 0)]
                else:
                    self.w = R(0); self.r = sum((R(i) for i in range(1, len(ops))), [])
            elif op.startswith(("buffer_store", "buffer_atomic")):
                self.r = sum((R(i) for i in range(0, len(ops))), [])
                if "x4" in op or "x3" in op: self.store_data = R(0)
                if op.startswith("buffer_atomic") and "sc0" in mods: self.w = R(0)
            elif op.startswith("global_load_lds"):
                self.r = sum((R(i) for i in range(0, len(ops))), []) + [("m0", 0)]
            elif op.startswith("global_load"):
                self.w = R(0); self.r = sum((R(i) for i in range(1, len(ops))), [])
            elif op.startswith("global_store"):
                self.r = sum((R(i) for i in range(0, len(ops))), [])
                if "x4" in op or "x3" in op: self.store_data = R(1)
            elif op.startswith("global_atomic"):
                if "sc0" in mods:
                    self.w = R(0); self.r = sum((R(i) for i in range(1, len(ops))), [])
                else:
                    self.r = sum((R(i) for i in range(0, len(ops))), [])
            else:
                raise ValueError("vmem? " + text)
        elif op.startswith("ds_"):
            self.cls = "ds"
            if op.startswith(("ds_read", "ds_bpermute", "ds_permute", "ds_swizzle")) or "rtn" in op:
                self.w = R(0); self.r = sum((R(i) for i in range(1, len(ops))), [])
            else:
                self.r = sum((R(i) for i in range(0, len(ops))), [])
        elif op.startswith("s_"):
            self.cls = "salu"
            if op == "s_nop":
                self.states = int(ops[0], 0) + 1
            elif op.startswith(("s_cmp", "s_bitcmp")):
                self.r = R(0) + R(1)
            elif op.startswith(("s_cbranch", "s_branch")):
                self.cls = "branch"; self.target = ops[0]
            elif op.startswith(("s_waitcnt", "s_barrier", "s_endpgm", "s_sleep", "s_setprio", "s_setpc")):
                pass
            elif op.startswith(("s_load", "s_memtime", "s_memrealtime", "s_buffer_load", "s_atomic")):
                self.cls = "smem"; self.w = R(0); self.r = sum((R(i) for i in range(1, len(ops))), [])
            else:
                self.w = R(0); self.r = sum((R(i) for i in range(1, len(ops))), [])
                if "saveexec" in op: self.w = self.w + [("exec", 0)]
        else:
            raise ValueError("unknown instr: " + text)

def is_valu(i): return i.cls in ("valu", "trans", "dot")

def need(prod, cons):
    n = 0
    pw = set(prod.w); cr = set(cons.r); cw = set(cons.w)
    vg = lambda s: {x for x in s if x[0] in "va" and x[0] != "vcc"}
    if is_valu(prod):
        pv = vg(pw)
        ps = {x for x in pw if x[0] in ("s", "vcc")}
        if cons.cls == "mfma" and pv & cr: n = max(n, 2)
        if cons.cls == "mfma" and ("exec", 0) in pw: n = max(n, 4)
        if prod.cls == "trans" and is_valu(cons) and cons.cls != "trans" and pv & cr: n = max(n, 1)
        if prod.cls == "trans" and cons.cls == "trans" and pv & cr: n = max(n, 1)
        if is_valu(cons) and ps & cr:
            n = max(n, 4 if cons.op.startswith(("v_readlane", "v_writelane")) else 2)
        if cons.cls == "vmem" and ps & cr: n = max(n, 5)
        if cons.op and cons.op.startswith(("v_readfirstlane", "v_readlane")) and pv & cr: n = max(n, 1)
        if cons.op and cons.op.startswith("v_permlane") and pv & cr: n = max(n, 2)
        if cons.op and ("dpp" in cons.op) and pv & cr: n = max(n, 2)
        if ("sdwa" in prod.op or any("op_sel" in m for m in prod.mods)) and is_valu(cons) and pv & (cr | cw): n = max(n, 1)
        if prod.cls == "dot" and (cons.cls in ("valu", "trans", "dot", "mfma", "vmem", "ds")):
            if pv & (cr | cw):
                if cons.op == prod.op:
                    ab = set(regs_of(cons.ops[1]) + regs_of(cons.ops[2]))
                    if pv & ab: n = max(n, 3)
                else:
                    n = max(n, 3)
        if ("exec", 0) in pw and cons.op and cons.op.startswith(("v_readlane", "v_readfirstlane", "v_writelane", "v_permlane")): n = max(n, 4)
    if prod.cls == "mfma":
        p = prod.passes
        full = {8: 12, 4: 8}[p]; ovl = {8: 10, 4: 6}[p]; war = {8: 7, 4: 3}[p]
        if cons.cls == "mfma":
            if pw & set(cons.srcAB): n = max(n, full)
            if pw & set(cons.srcC):
                if not (set(cons.srcC) == pw and cons.passes == p): n = max(n, ovl)
            elif pw & cw:
                n = max(n, full)
        elif is_valu(cons) or cons.cls in ("vmem", "ds"):
            if pw & (cr | cw): n = max(n, full)
            if is_valu(cons) and set(prod.srcC) & cw: n = max(n, war)
    if prod.cls == "salu" and ("m0", 0) in pw and cons.cls in ("vmem", "ds") and ("m0", 0) in cr: n = max(n, 1)
    if prod.cls == "vmem" and prod.store_data and set(prod.store_data) & cw:
        n = max(n, 2 if is_valu(cons) else 1)
    return n

MAXD = 14

def fix_hazards(lines):
    ins = [Ins(l) for l in lines]
    for x in ins: x.pre = 0
    labels = {x.label: i for i, x in enumerate(ins) if x.label}
    preds = [[] for _ in ins]
    for i, x in enumerate(ins):
        if i + 1 < len(ins):
            if not (x.op in ("s_branch", "s_endpgm") or (x.op or "").startswith("s_setpc")):
                preds[i + 1].append(i)
        if x.cls == "branch" and x.target in labels:
            preds[labels[x.target]].append(i)
    changed = True
    rounds = 0
    while changed:
        rounds += 1
        assert rounds < 20
        changed = False
        for i, c in enumerate(ins):
            if c.cls in ("none", "label"): continue
            worst = 0
            stack = [(p, c.pre) for p in preds[i]]
            seen = {}
            while stack:
                j, d = stack.pop()
                if d >= MAXD: continue
                if j in seen and seen[j] <= d: continue
                seen[j] = d
                p = ins[j]
                if p.cls not in ("none", "label"):
                    n = need(p, c)
                    if n > d: worst = max(worst, n - d)
                for q in preds[j]:
                    stack.append((q, d + p.states + p.pre))
            if worst > 0:
                c.pre += worst
                changed = True
    out = []
    for x in ins:
        k = x.pre
        while k > 0:
            m = min(k, 16)
            out.append(f"    s_nop {m-1}")
            k -= m
        out.append(x.text)
    return out

class Asm:
    def __init__(self):
        self.lines = []
    def __call__(self, s):
        for l in s.strip("\n").split("\n"):
            l = l.rstrip()
            if not l.strip(): continue
            t = l.strip()
            if t.endswith(":") or t.startswith("."):
                self.lines.append(t)
            else:
                self.lines.append("    " + t)
    def text(self, fix=True):
        ls = fix_hazards(self.lines) if fix else self.lines
        return "\n".join(ls) + "\n"
```

```python
import sys, struct
sys.path.insert(0, "gen")
from asmlib import Asm

NAME = "interleave_layers__linear_attn_block__glu_gated_geglu__prompt"

WQKV_P = 0x000000
WO_P   = 0x180000
WGU_P  = 0x200000
WD_P   = 0x580000
X0F    = 0x800000
X1F    = 0xA00000
X2F    = 0xC00000
X3F    = 0xE00000
PQ     = 0x1000000
HB     = 0x1200000
KV     = 0x1A00000
WS_BYTES = 0x1B00000

def f32(x): return "0x%08x" % struct.unpack("<I", struct.pack("<f", x))[0]
LOG2E = 1.4426950408889634

def magic_div(d, nmax, shift=16):
    m = -(-(1 << shift) // d)
    for n in range(nmax):
        assert (n * m) >> shift == n // d, (d, n)
    return m

class VM:
    def __init__(self, a): self.a = a; self.n = 0
    def op(self, text):
        self.a(text); self.n += 1; return self.n - 1
    def wait(self, seq, extra=""):
        c = self.n - seq - 1
        assert c >= 0
        c = min(c, 63)
        self.a(f"s_waitcnt vmcnt({c}){extra}")

kernels = []

def header(a, name):
    a(f"""
.globl {name}
.p2align 8
.type {name},@function
{name}:
""")

def ws_srd(a, s=8):
    a(f"""
s_mov_b32 s{s}, s32
s_mov_b32 s{s+1}, s33
s_mov_b32 s{s+2}, {hex(WS_BYTES)}
s_mov_b32 s{s+3}, 0x20000
""")

def gen_k0(a):
    name = "k0_pack_kernel"
    header(a, name)
    a(f"""
s_cmp_ge_u32 s2, 304
s_cbranch_scc1 K0_done
s_load_dwordx16 s[16:31], s[0:1], 0
s_load_dwordx2 s[32:33], s[0:1], 72
v_lshrrev_b32 v1, 6, v0
v_and_b32 v2, 63, v0
v_readfirstlane_b32 s4, v1
v_lshlrev_b32 v3, 4, v2
s_lshl_b32 s5, s2, 2
s_add_u32 s5, s5, s4
s_lshl_b32 s6, s4, 13
s_waitcnt lgkmcnt(0)
""")
    ws_srd(a)
    a(f"""
s_mov_b32 s15, 0x20000
s_mov_b32 s39, 0x20000
s_cmp_ge_u32 s2, 296
s_cbranch_scc1 K0_zero
s_cmp_ge_u32 s2, 232
s_cbranch_scc1 K0_x
s_cmp_ge_u32 s2, 176
s_cbranch_scc1 K0_wd
s_cmp_ge_u32 s2, 64
s_cbranch_scc1 K0_gu
s_cmp_ge_u32 s2, 48
s_cbranch_scc1 K0_wo
""")
    m24 = magic_div(24, 192)
    a(f"""
s_mul_i32 s40, s5, {m24}
s_lshr_b32 s40, s40, 16
s_mul_i32 s41, s40, 24
s_sub_u32 s41, s5, s41
s_mov_b32 s12, s18
s_mov_b32 s13, s19
s_mov_b32 s14, {512*1536*2}
s_mov_b32 s42, 3072
s_lshl_b32 s43, s41, 1
s_and_b32 s43, s43, 15
s_lshl_b32 s43, s43, 5
s_lshl_b32 s44, s40, 2
s_add_u32 s43, s43, s44
s_mul_i32 s43, s43, 3
s_lshr_b32 s44, s41, 3
s_add_u32 s43, s43, s44
s_lshl_b32 s43, s43, 10
s_add_u32 s43, s43, {WQKV_P}
s_mov_b32 s45, 3072
s_mov_b32 s46, 98304
s_branch K0_gen
K0_wo:
s_sub_u32 s5, s5, 192
s_lshr_b32 s40, s5, 3
s_and_b32 s41, s5, 7
s_mov_b32 s12, s20
s_mov_b32 s13, s21
s_mov_b32 s14, {512*512*2}
s_mov_b32 s42, 1024
s_lshl_b32 s43, s41, 5
s_lshl_b32 s44, s40, 2
s_add_u32 s43, s43, s44
s_lshl_b32 s43, s43, 11
s_add_u32 s43, s43, {WO_P}
s_mov_b32 s45, 2048
s_mov_b32 s46, 1024
s_branch K0_gen
K0_wd:
s_sub_u32 s5, s5, 704
s_lshr_b32 s40, s5, 3
s_and_b32 s41, s5, 7
s_mov_b32 s12, s28
s_mov_b32 s13, s29
s_mov_b32 s14, {1792*512*2}
s_mov_b32 s42, 1024
s_mul_i32 s43, s41, 112
s_lshl_b32 s44, s40, 2
s_add_u32 s43, s43, s44
s_lshl_b32 s43, s43, 11
s_add_u32 s43, s43, {WD_P}
s_mov_b32 s45, 2048
s_mov_b32 s46, 1024
K0_gen:
""")
    a(f"""
s_mul_i32 s47, s40, s42
s_lshl_b32 s47, s47, 6
s_lshl_b32 s44, s41, 7
s_add_u32 s47, s47, s44
s_lshl_b32 s48, s42, 3
v_lshrrev_b32 v4, 3, v2
v_mul_lo_u32 v4, v4, s42
v_and_b32 v5, 7, v2
v_lshlrev_b32 v5, 4, v5
v_add_u32 v4, v4, v5
s_mov_b32 s49, s6
""")
    for i in range(8):
        a(f"""
s_mov_b32 m0, s49
s_add_u32 s49, s49, 1024
buffer_load_dwordx4 v4, s[12:15], s47 offen lds
s_add_u32 s47, s47, s48
""")
    a(f"""
v_lshrrev_b32 v5, 5, v2
v_lshlrev_b32 v5, 2, v5
v_bfe_u32 v6, v2, 2, 2
v_add_u32 v5, v5, v6
v_lshlrev_b32 v5, 7, v5
v_bfe_u32 v6, v2, 4, 1
v_lshlrev_b32 v6, 5, v6
v_add_u32 v5, v5, v6
v_and_b32 v6, 3, v2
v_lshlrev_b32 v6, 3, v6
v_add_u32 v5, v5, v6
v_add_u32 v5, s6, v5
s_waitcnt vmcnt(0)
""")
    for ksl in range(4):
        for ntl in range(2):
            d = 16 + (ksl * 2 + ntl) * 4
            off = ksl * 2048 + ntl * 64
            a(f"""
ds_read_b64_tr_b16 v[{d}:{d+1}], v5 offset:{off}
ds_read_b64_tr_b16 v[{d+2}:{d+3}], v5 offset:{off+1024}
""")
    a("s_waitcnt lgkmcnt(0)")
    for ksl in range(4):
        d = 16 + (ksl * 2) * 4
        a(f"""
s_add_u32 s44, s43, s46
buffer_store_dwordx4 v[{d}:{d+3}], v3, s[8:11], s43 offen
buffer_store_dwordx4 v[{d+4}:{d+7}], v3, s[8:11], s44 offen
s_add_u32 s43, s43, s45
""")
    a("s_endpgm")
    m28 = magic_div(28, 448)
    a(f"""
K0_gu:
s_sub_u32 s5, s5, 256
s_mul_i32 s40, s5, {m28}
s_lshr_b32 s40, s40, 16
s_mul_i32 s41, s40, 28
s_sub_u32 s41, s5, s41
s_mov_b32 s12, s24
s_mov_b32 s13, s25
s_mov_b32 s14, {512*1792*2}
s_mov_b32 s36, s26
s_mov_b32 s37, s27
s_mov_b32 s38, {512*1792*2}
s_mul_i32 s47, s40, {32*3584}
s_lshl_b32 s44, s41, 7
s_add_u32 s47, s47, s44
v_lshrrev_b32 v4, 3, v2
v_mul_u32_u24 v4, 3584, v4
v_and_b32 v5, 7, v2
v_lshlrev_b32 v5, 4, v5
v_add_u32 v4, v4, v5
s_mov_b32 s49, s6
s_add_u32 s50, s6, 4096
""")
    for i in range(4):
        a(f"""
s_mov_b32 m0, s49
s_add_u32 s49, s49, 1024
buffer_load_dwordx4 v4, s[12:15], s47 offen lds
s_mov_b32 m0, s50
s_add_u32 s50, s50, 1024
buffer_load_dwordx4 v4, s[36:39], s47 offen lds
s_add_u32 s47, s47, {8*3584}
""")
    a(f"""
v_lshrrev_b32 v5, 5, v2
v_lshlrev_b32 v5, 2, v5
v_bfe_u32 v6, v2, 2, 2
v_add_u32 v5, v5, v6
v_bfe_u32 v6, v2, 4, 1
v_lshlrev_b32 v6, 5, v6
v_add_u32 v5, v5, v6
v_lshlrev_b32 v5, 7, v5
v_and_b32 v6, 3, v2
v_lshlrev_b32 v6, 3, v6
v_add_u32 v5, v5, v6
v_add_u32 v5, s6, v5
s_lshl_b32 s43, s41, 7
s_lshl_b32 s44, s40, 1
s_add_u32 s43, s43, s44
s_lshl_b32 s43, s43, 10
s_add_u32 s43, s43, {WGU_P}
s_waitcnt vmcnt(0)
""")
    for ntl in range(4):
        for ksl in range(2):
            d = 16 + (ntl * 2 + ksl) * 4
            off = ksl * 2048 + ntl * 32
            a(f"""
ds_read_b64_tr_b16 v[{d}:{d+1}], v5 offset:{off}
ds_read_b64_tr_b16 v[{d+2}:{d+3}], v5 offset:{off+1024}
""")
    a("s_waitcnt lgkmcnt(0)")
    for ntl in range(4):
        d = 16 + (ntl * 2) * 4
        a(f"""
buffer_store_dwordx4 v[{d}:{d+3}], v3, s[8:11], s43 offen
buffer_store_dwordx4 v[{d+4}:{d+7}], v3, s[8:11], s43 offen offset:1024
s_add_u32 s43, s43, 32768
""")
    a("s_endpgm")
    a(f"""
K0_x:
s_sub_u32 s5, s5, 928
s_lshr_b32 s40, s5, 2
s_and_b32 s41, s5, 3
s_mov_b32 s12, s16
s_mov_b32 s13, s17
s_mov_b32 s14, {2048*512*2}
s_lshl_b32 s47, s40, 15
s_lshl_b32 s44, s41, 8
s_add_u32 s47, s47, s44
v_and_b32 v4, 31, v2
v_lshlrev_b32 v4, 10, v4
v_lshrrev_b32 v5, 5, v2
v_lshlrev_b32 v5, 4, v5
v_add_u32 v4, v4, v5
s_lshl_b32 s43, s5, 13
s_add_u32 s43, s43, {X0F}
s_add_u32 s44, s43, 4096
""")
    for ksl in range(8):
        d = 16 + ksl * 4
        a(f"buffer_load_dwordx4 v[{d}:{d+3}], v4, s[12:15], s47 offen offset:{ksl*32}")
    for ksl in range(8):
        d = 16 + ksl * 4
        sb = "s43" if ksl < 4 else "s44"
        a(f"""
s_waitcnt vmcnt({7})
v_permlane32_swap_b32 v{d}, v{d+2}
v_permlane32_swap_b32 v{d+1}, v{d+3}
buffer_store_dwordx4 v[{d}:{d+3}], v3, s[8:11], {sb} offen offset:{(ksl%4)*1024}
""")
    a("s_endpgm")
    a(f"""
K0_zero:
s_sub_u32 s5, s2, 296
s_lshl_b32 s43, s5, 14
s_add_u32 s43, s43, {KV}
v_lshlrev_b32 v4, 4, v0
v_mov_b32 v16, 0
v_mov_b32 v17, 0
v_mov_b32 v18, 0
v_mov_b32 v19, 0
""")
    for i in range(4):
        a(f"""
buffer_store_dwordx4 v[16:19], v4, s[8:11], s43 offen
s_add_u32 s43, s43, 4096
""")
    a("""
K0_done:
s_endpgm
""")
    kernels.append((name, 64, 64, 64))

def load_A(a, vm, A, vL16, sOff):
    seqs = []
    for ks in range(32):
        r = A + 4 * ks
        seqs.append(vm.op(f"buffer_load_dwordx4 v[{r}:{r+3}], v{vL16}, s[8:11], s{sOff} offen offset:{(ks%4)*1024}"))
        if ks % 4 == 3 and ks != 31:
            a(f"s_add_u32 s{sOff}, s{sOff}, 4096")
    return seqs

def ln_stats(a, vm, A, seqs, T):
    S0, S1, Q0, Q1, ONE = T, T + 1, T + 2, T + 3, T + 4
    a(f"""
v_mov_b32 v{S0}, 0
v_mov_b32 v{S1}, 0
v_mov_b32 v{Q0}, 0
v_mov_b32 v{Q1}, 0
v_mov_b32 v{ONE}, 0x3f803f80
""")
    for ks in range(32):
        if ks % 2 == 0:
            vm.wait(seqs[ks + 1])
        for d in range(4):
            r = A + 4 * ks + d
            s = S0 if d % 2 == 0 else S1
            q = Q0 if d % 2 == 0 else Q1
            a(f"v_dot2_f32_bf16 v{s}, v{r}, v{ONE}, v{s}")
            a(f"v_dot2_f32_bf16 v{q}, v{r}, v{r}, v{q}")
    a(f"""
v_add_f32 v{S0}, v{S0}, v{S1}
v_add_f32 v{Q0}, v{Q0}, v{Q1}
v_mov_b32 v{S1}, v{S0}
v_mov_b32 v{Q1}, v{Q0}
v_permlane32_swap_b32 v{S0}, v{S1}
v_permlane32_swap_b32 v{Q0}, v{Q1}
v_add_f32 v{S0}, v{S0}, v{S1}
v_add_f32 v{Q0}, v{Q0}, v{Q1}
v_mul_f32 v{S0}, {f32(1.0/512)}, v{S0}
v_mul_f32 v{Q0}, {f32(1.0/512)}, v{Q0}
v_fma_f32 v{Q0}, -v{S0}, v{S0}, v{Q0}
v_max_f32 v{Q0}, 0, v{Q0}
v_add_f32 v{Q0}, {f32(1e-5)}, v{Q0}
v_rsq_f32 v{Q1}, v{Q0}
v_mul_f32 v{S1}, v{S0}, v{Q1}
v_sub_f32 v{T+1}, 0, v{S1}
v_mov_b32 v{T}, v{Q1}
""")

def ln_apply(a, A, ks, T, U):
    for d in range(4):
        r = A + 4 * ks + d
        lo = U + (d % 2) * 2; hi = lo + 1
        a(f"""
v_lshlrev_b32 v{lo}, 16, v{r}
v_and_b32 v{hi}, 0xffff0000, v{r}
v_fma_f32 v{lo}, v{lo}, v{T}, v{T+1}
v_fma_f32 v{hi}, v{hi}, v{T}, v{T+1}
v_cvt_pk_bf16_f32 v{r}, v{lo}, v{hi}
""")

def phi(a, r, t):
    a(f"""
v_mul_f32 v{t}, {f32(LOG2E)}, v{r}
v_min_f32 v{t}, 0, v{t}
v_exp_f32 v{t}, v{t}
v_max_f32 v{r}, 0, v{r}
v_add_f32 v{r}, {f32(1e-6)}, v{r}
v_add_f32 v{r}, v{r}, v{t}
""")

def common_prologue(a, nwg, done):
    a(f"""
s_cmp_ge_u32 s2, {nwg}
s_cbranch_scc1 {done}
s_load_dwordx2 s[32:33], s[0:1], 72
s_load_dwordx2 s[34:35], s[0:1], 56
v_lshrrev_b32 v1, 6, v0
v_and_b32 v2, 63, v0
v_readfirstlane_b32 s4, v1
v_lshlrev_b32 v3, 4, v2
""")

def gen_p1(a):
    for layer in range(2):
        name = f"p1_l{layer}_kernel"
        header(a, name)
        a(f"""
s_mov_b32 s40, {X0F if layer == 0 else X2F}
s_mov_b32 s41, {KV + layer * 65536}
s_branch P1_body
""")
        kernels.append((name, 256, 256, 64))
    a(".p2align 6\nP1_body:")
    vm = VM(a)
    common_prologue(a, 256, "P1_done")
    A = 64; AQ = 192; AK = 208; AV = 224; B = 16
    a(f"""
s_and_b32 s5, s2, 7
s_lshr_b32 s6, s2, 3
s_lshr_b32 s7, s5, 1
s_lshl_b32 s7, s7, 2
s_lshr_b32 s12, s6, 3
s_add_u32 s7, s7, s12
s_and_b32 s5, s5, 1
s_lshl_b32 s5, s5, 3
s_and_b32 s6, s6, 7
s_add_u32 s6, s6, s5
s_lshl_b32 s12, s7, 2
s_add_u32 s12, s12, s4
s_lshl_b32 s13, s12, 15
s_add_u32 s14, s13, s40
s_mul_i32 s15, s6, 98304
s_mul_i32 s16, s4, 6144
s_add_u32 s15, s15, s16
s_waitcnt lgkmcnt(0)
""")
    ws_srd(a)
    seqs = load_A(a, vm, A, 3, 14)
    last = None
    for c in range(4):
        a(f"s_mov_b32 m0, s16")
        for i in range(4):
            last = vm.op(f"buffer_load_dwordx4 v3, s[8:11], s15 offen offset:{i*1024} lds")
        a(f"s_add_u32 s17, s16, 4096\ns_add_u32 s18, s15, 4096\ns_mov_b32 m0, s17")
        for i in range(2):
            last = vm.op(f"buffer_load_dwordx4 v3, s[8:11], s18 offen offset:{i*1024} lds")
        a(f"s_add_u32 s16, s16, 24576\ns_add_u32 s15, s15, 24576")
    T = 4
    ln_stats(a, vm, A, seqs, T)
    for ks in range(32):
        ln_apply(a, A, ks, T, 10)
    vm.wait(last)
    a("s_barrier")
    a(f"v_add_u32 v14, 0xc000, v3")
    def bread(ks):
        s = ks % 4
        for j in range(3):
            o = (ks * 3 + j) * 1024
            base = 3 if o < 49152 else 14
            if o >= 49152: o -= 49152
            r = B + (s * 3 + j) * 4
            a(f"ds_read_b128 v[{r}:{r+3}], v{base} offset:{o}")
    bread(0); bread(1)
    for ks in range(32):
        if ks + 2 < 32:
            bread(ks + 2)
            a("s_waitcnt lgkmcnt(6)")
        elif ks + 1 < 32:
            a("s_waitcnt lgkmcnt(3)")
        else:
            a("s_waitcnt lgkmcnt(0)")
        s = ks % 4
        ar = A + 4 * ks
        b = lambda j: f"v[{B+(s*3+j)*4}:{B+(s*3+j)*4+3}]"
        c = lambda r: ("0" if ks == 0 else f"v[{r}:{r+15}]")
        a(f"v_mfma_f32_32x32x16_bf16 v[{AK}:{AK+15}], v[{ar}:{ar+3}], {b(1)}, {c(AK)}")
        a(f"v_mfma_f32_32x32x16_bf16 v[{AV}:{AV+15}], v[{ar}:{ar+3}], {b(2)}, {c(AV)}")
        a(f"v_mfma_f32_32x32x16_bf16 v[{AQ}:{AQ+15}], {b(0)}, v[{ar}:{ar+3}], {c(AQ)}")
    KF = 16; VF = 24; B1 = 32; B2 = 40; D1 = 64; D2 = 80
    for r in range(16):
        phi(a, AK + r, 4 + (r % 4))
    for i in range(8):
        a(f"v_cvt_pk_bf16_f32 v{KF+i}, v{AK+2*i}, v{AK+2*i+1}")
        a(f"v_cvt_pk_bf16_f32 v{VF+i}, v{AV+2*i}, v{AV+2*i+1}")
    a(f"""
v_and_b32 v4, 16, v2
v_cmp_eq_u32 vcc, 0, v4
v_mov_b32 v5, 0x3f803f80
""")
    for i in range(8):
        a(f"v_cndmask_b32 v{B1+i}, v5, v{VF+i}, vcc")
        a(f"v_cndmask_b32 v{B2+i}, v{VF+i}, v5, vcc")
    a(f"""
v_mfma_f32_32x32x16_bf16 v[{D1}:{D1+15}], v[{KF}:{KF+3}], v[{B1}:{B1+3}], 0
v_mfma_f32_32x32x16_bf16 v[{D2}:{D2+15}], v[{KF}:{KF+3}], v[{B2}:{B2+3}], 0
v_mfma_f32_32x32x16_bf16 v[{D1}:{D1+15}], v[{KF+4}:{KF+7}], v[{B1+4}:{B1+7}], v[{D1}:{D1+15}]
v_mfma_f32_32x32x16_bf16 v[{D2}:{D2+15}], v[{KF+4}:{KF+7}], v[{B2+4}:{B2+7}], v[{D2}:{D2+15}]
""")
    QF = 48
    for r in range(16):
        phi(a, AQ + r, 4 + (r % 4))
    for i in range(8):
        a(f"v_cvt_pk_bf16_f32 v{QF+i}, v{AQ+2*i}, v{AQ+2*i+1}")
    a(f"""
s_lshl_b32 s17, s6, 11
s_add_u32 s17, s17, s13
s_add_u32 s17, s17, {PQ}
buffer_store_dwordx4 v[{QF}:{QF+3}], v3, s[8:11], s17 offen
buffer_store_dwordx4 v[{QF+4}:{QF+7}], v3, s[8:11], s17 offen offset:1024
""")
    RED = 98304
    a(f"""
s_lshl_b32 s18, s4, 12
s_add_u32 s18, s18, {RED}
v_add_u32 v4, s18, v3
ds_write_b128 v4, v[{D1}:{D1+3}]
ds_write_b128 v4, v[{D1+4}:{D1+7}] offset:1024
ds_write_b128 v4, v[{D2+8}:{D2+11}] offset:2048
ds_write_b128 v4, v[{D2+12}:{D2+15}] offset:3072
s_lshl_b32 s18, s4, 10
s_add_u32 s18, s18, {RED}
v_lshlrev_b32 v6, 2, v2
v_add_u32 v5, s18, v6
s_waitcnt lgkmcnt(0)
s_barrier
""")
    for i in range(4):
        for w in range(4):
            a(f"ds_read_b32 v{16+i*4+w}, v5 offset:{w*4096+i*256}")
    a(f"""
s_lshl_b32 s18, s6, 12
s_add_u32 s18, s18, s41
s_lshl_b32 s19, s4, 10
s_add_u32 s18, s18, s19
s_waitcnt lgkmcnt(0)
""")
    for i in range(4):
        r = 16 + i * 4
        a(f"""
v_add_f32 v{r}, v{r}, v{r+1}
v_add_f32 v{r+2}, v{r+2}, v{r+3}
v_add_f32 v{r}, v{r}, v{r+2}
buffer_atomic_add_f32 v{r}, v6, s[8:11], s18 offen offset:{i*256}
""")
    a("""
P1_done:
s_endpgm
""")

def reduce_tail(a, vm, RX, rx_seq, pfx, sOutOff, final_flag=None):
    for s in range(1, 4):
        a(f"""
s_xor_b32 s20, s4, {s}
s_mul_i32 s20, s20, 12288
s_add_u32 s20, s20, {(s-1)*4096}
v_add_u32 v{4+s}, s20, v3
""")
    for s in range(1, 4):
        for q in range(4):
            a(f"ds_write_b128 v{4+s}, a[{16*s+4*q}:{16*s+4*q+3}] offset:{q*1024}")
    a(f"""
s_mul_i32 s20, s4, 12288
v_add_u32 v4, s20, v3
""")
    O = 16
    for r in range(16):
        a(f"v_accvgpr_read_b32 v{O+r}, a{r}")
    a("s_waitcnt lgkmcnt(0)\ns_barrier")
    P = 64
    for s in range(3):
        for q in range(4):
            r = P + s * 16 + q * 4
            a(f"ds_read_b128 v[{r}:{r+3}], v4 offset:{s*4096+q*1024}")
    vm.wait(rx_seq)
    for i in range(8):
        a(f"""
v_lshlrev_b32 v{8+(i%2)*2}, 16, v{RX+i}
v_and_b32 v{9+(i%2)*2}, 0xffff0000, v{RX+i}
v_add_f32 v{O+2*i}, v{O+2*i}, v{8+(i%2)*2}
v_add_f32 v{O+2*i+1}, v{O+2*i+1}, v{9+(i%2)*2}
""")
    for s in range(3):
        a(f"s_waitcnt lgkmcnt({8-4*s})")
        for r in range(16):
            a(f"v_add_f32 v{O+r}, v{O+r}, v{P+s*16+r}")
    for i in range(8):
        a(f"v_cvt_pk_bf16_f32 v{RX+i}, v{O+2*i}, v{O+2*i+1}")
    if final_flag is not None:
        a(f"""
s_cmp_eq_u32 s{final_flag}, 1
s_cbranch_scc1 {pfx}_final
""")
    a(f"""
buffer_store_dwordx4 v[{RX}:{RX+3}], v3, s[8:11], s{sOutOff} offen
buffer_store_dwordx4 v[{RX+4}:{RX+7}], v3, s[8:11], s{sOutOff} offen offset:1024
s_endpgm
""")

def tile64_map(a):
    a(f"""
s_and_b32 s5, s2, 7
s_lshr_b32 s6, s2, 3
s_lshl_b32 s7, s5, 2
s_lshr_b32 s12, s6, 3
s_add_u32 s7, s7, s12
s_and_b32 s6, s6, 7
s_and_b32 s5, s4, 1
s_lshr_b32 s12, s4, 1
""")

def gen_p2(a):
    for layer in range(2):
        name = f"p2_l{layer}_kernel"
        header(a, name)
        a(f"""
s_mov_b32 s40, {X0F if layer == 0 else X2F}
s_mov_b32 s41, {KV + layer * 65536}
s_mov_b32 s42, {X1F if layer == 0 else X3F}
s_branch P2_body
""")
        kernels.append((name, 320, 256, 64))
    a(".p2align 6\nP2_body:")
    vm = VM(a)
    common_prologue(a, 256, "P2_done")
    tile64_map(a)
    PQR = 64
    KVR = 128
    WOR = 192
    RX = 56
    a(f"""
s_lshl_b32 s13, s7, 1
s_add_u32 s14, s13, s12
s_xor_b32 s15, s14, 1
s_lshl_b32 s14, s14, 15
s_lshl_b32 s15, s15, 15
s_lshl_b32 s16, s4, 13
s_add_u32 s17, s14, s16
s_add_u32 s17, s17, {PQ}
s_add_u32 s18, s15, s16
s_add_u32 s18, s18, {PQ}
s_lshl_b32 s19, s4, 14
s_add_u32 s19, s19, s41
s_lshl_b32 s21, s6, 16
s_lshl_b32 s22, s4, 14
s_add_u32 s21, s21, s22
s_add_u32 s21, s21, {WO_P}
s_lshl_b32 s22, s5, 10
s_add_u32 s23, s21, s22
s_xor_b32 s22, s22, 1024
s_add_u32 s24, s21, s22
s_lshl_b32 s25, s6, 12
s_lshl_b32 s26, s5, 11
s_add_u32 s25, s25, s26
s_add_u32 s25, s25, s14
s_add_u32 s26, s25, s40
s_add_u32 s27, s25, s42
s_waitcnt lgkmcnt(0)
""")
    ws_srd(a)
    kvseq = []; pqseq = {}; woseq = {}
    for i in range(8):
        r = KVR + 8 * i
        vm.op(f"buffer_load_dwordx4 v[{r}:{r+3}], v3, s[8:11], s19 offen offset:{(i%2)*2048}")
        kvseq.append(vm.op(f"buffer_load_dwordx4 v[{r+4}:{r+7}], v3, s[8:11], s19 offen offset:{(i%2)*2048+1024}"))
        if i % 2 == 1: a("s_add_u32 s19, s19, 4096")
        for aa in range(2):
            r = PQR + (aa * 8 + i) * 4
            pqseq[(aa, i)] = vm.op(f"buffer_load_dwordx4 v[{r}:{r+3}], v3, s[8:11], s{17+aa} offen offset:{(i%4)*1024}")
        if i == 3: a("s_add_u32 s17, s17, 4096\ns_add_u32 s18, s18, 4096")
        for b in range(2):
            r = WOR + (i * 2 + b) * 4
            woseq[(i, b)] = vm.op(f"buffer_load_dwordx4 v[{r}:{r+3}], v3, s[8:11], s{23+b} offen offset:{(i%2)*2048}")
        if i % 2 == 1: a("s_add_u32 s23, s23, 4096\ns_add_u32 s24, s24, 4096")
    vm.op(f"buffer_load_dwordx4 v[{RX}:{RX+3}], v3, s[8:11], s26 offen")
    rxseq = vm.op(f"buffer_load_dwordx4 v[{RX+4}:{RX+7}], v3, s[8:11], s26 offen offset:1024")
    DB = [16, 32]
    def stage1(i):
        vm.wait(pqseq[(1, i)])
        r = KVR + 8 * i
        for j in range(4):
            a(f"v_cvt_pk_bf16_f32 v{r+j}, v{r+2*j}, v{r+2*j+1}")
        for aa in range(2):
            p = PQR + (aa * 8 + i) * 4
            d = DB[aa]
            a(f"v_mfma_f32_32x32x16_bf16 v[{d}:{d+15}], v[{r}:{r+3}], v[{p}:{p+3}], 0")
    def stage2(i):
        for aa in range(2):
            d = DB[aa]; p = PQR + (aa * 8 + i) * 4
            num = d + (0 if i % 2 == 0 else 8); den = d + (8 if i % 2 == 0 else 0)
            a(f"v_add_f32 v{den}, {f32(1e-6)}, v{den}")
            a(f"v_rcp_f32 v{den}, v{den}")
            for j in range(8):
                a(f"v_mul_f32 v{num+j}, v{num+j}, v{den}")
            for j in range(4):
                a(f"v_cvt_pk_bf16_f32 v{p+j}, v{num+2*j}, v{num+2*j+1}")
    def stage3(i):
        vm.wait(woseq[(i, 1)])
        for aa in range(2):
            p = PQR + (aa * 8 + i) * 4
            for b in range(2):
                s = aa * 2 + b
                w = WOR + (i * 2 + b) * 4
                c = "0" if i == 0 else f"a[{16*s}:{16*s+15}]"
                a(f"v_mfma_f32_32x32x16_bf16 a[{16*s}:{16*s+15}], v[{w}:{w+3}], v[{p}:{p+3}], {c}")
    stage1(0)
    for i in range(8):
        stage2(i)
        if i + 1 < 8: stage1(i + 1)
        stage3(i)
    reduce_tail(a, vm, RX, rxseq, "P2", 27)
    a("P2_done:\ns_endpgm")

def gelu_tile(a, ACC, HF, T):
    c = 0.7978845608028654
    ka = -2.0 * c * 0.044715 * LOG2E
    kb = -2.0 * c * LOG2E
    a(f"s_mov_b32 s30, {f32(ka)}\ns_mov_b32 s31, {f32(kb)}")
    for j in range(8):
        g = ACC + j; u = ACC + 8 + j; t = T + (j % 4)
        a(f"""
v_mul_f32 v{t}, v{g}, v{g}
v_mov_b32 v{T+4}, s31
v_fma_f32 v{t}, v{t}, s30, v{T+4}
v_mul_f32 v{t}, v{t}, v{g}
v_exp_f32 v{t}, v{t}
v_mul_f32 v{g}, v{g}, v{u}
v_add_f32 v{t}, 1.0, v{t}
v_rcp_f32 v{t}, v{t}
v_mul_f32 v{g}, v{g}, v{t}
""")
    for j in range(4):
        a(f"v_cvt_pk_bf16_f32 v{HF+j}, v{ACC+2*j}, v{ACC+2*j+1}")

def gen_p3(a):
    for layer in range(2):
        name = f"p3_l{layer}_kernel"
        header(a, name)
        a(f"""
s_mov_b32 s40, {X1F if layer == 0 else X3F}
s_branch P3_body
""")
        kernels.append((name, 256, 256, 64))
    a(".p2align 6\nP3_body:")
    vm = VM(a)
    common_prologue(a, 256, "P3_done")
    A = 64; ACC = [192, 208]; B = 16; HF = 48
    a(f"""
s_and_b32 s5, s2, 7
s_lshr_b32 s6, s2, 3
s_lshr_b32 s7, s5, 2
s_lshl_b32 s7, s7, 3
s_lshr_b32 s12, s6, 2
s_add_u32 s7, s7, s12
s_and_b32 s5, s5, 3
s_lshl_b32 s5, s5, 2
s_and_b32 s6, s6, 3
s_add_u32 s6, s6, s5
s_lshl_b32 s12, s7, 2
s_add_u32 s12, s12, s4
s_lshl_b32 s13, s12, 15
s_add_u32 s14, s13, s40
s_mul_i32 s15, s6, {7*32768}
s_lshl_b32 s16, s4, 13
s_add_u32 s15, s15, s16
s_add_u32 s15, s15, {WGU_P}
s_mul_i32 s19, s12, {112*1024}
s_mul_i32 s20, s6, {7*1024}
s_add_u32 s19, s19, s20
s_add_u32 s19, s19, {HB}
s_waitcnt lgkmcnt(0)
""")
    ws_srd(a)
    seqs = load_A(a, vm, A, 3, 14)
    tseq = {}
    def dma_tile(t):
        slot = t % 5
        a(f"s_add_u32 s17, s16, {slot*32768}\ns_add_u32 s18, s15, {t*32768}\ns_mov_b32 m0, s17")
        for i in range(4):
            vm.op(f"buffer_load_dwordx4 v3, s[8:11], s18 offen offset:{i*1024} lds")
        a(f"s_add_u32 s17, s17, 4096\ns_add_u32 s18, s18, 4096\ns_mov_b32 m0, s17")
        for i in range(4):
            tseq[t] = vm.op(f"buffer_load_dwordx4 v3, s[8:11], s18 offen offset:{i*1024} lds")
    for t in range(3): dma_tile(t)
    T = 4
    ln_stats(a, vm, A, seqs, T)
    for t in range(3, 5): dma_tile(t)
    for ks in range(32):
        ln_apply(a, A, ks, T, 10)
    NB = 8
    for t in range(7):
        slot = t % 5
        vm.wait(tseq[t])
        a("s_barrier")
        if t >= 1 and t + 4 < 7:
            dma_tile(t + 4)
        a(f"v_add_u32 v14, {slot*32768}, v3")
        acc = ACC[t % 2]
        def bread(ks):
            r = B + (ks % NB) * 4
            a(f"ds_read_b128 v[{r}:{r+3}], v14 offset:{ks*1024}")
        for k in range(4): bread(k)
        for ks in range(32):
            if ks + 4 < 32:
                bread(ks + 4)
                a("s_waitcnt lgkmcnt(4)")
            else:
                a(f"s_waitcnt lgkmcnt({31-ks})")
            r = B + (ks % NB) * 4
            ar = A + 4 * ks
            c = "0" if ks == 0 else f"v[{acc}:{acc+15}]"
            a(f"v_mfma_f32_32x32x16_bf16 v[{acc}:{acc+15}], v[{r}:{r+3}], v[{ar}:{ar+3}], {c}")
        gelu_tile(a, acc, HF + (t % 2) * 4, 4)
        h = HF + (t % 2) * 4
        if t == 4: a("s_add_u32 s19, s19, 4096")
        vm.op(f"buffer_store_dwordx4 v[{h}:{h+3}], v3, s[8:11], s19 offen offset:{(t%4)*1024}")
    a("P3_done:\ns_endpgm")

def gen_p4(a):
    for layer in range(2):
        name = f"p4_l{layer}_kernel"
        header(a, name)
        a(f"""
s_mov_b32 s40, {X1F if layer == 0 else X3F}
s_mov_b32 s42, {X2F}
s_mov_b32 s43, {layer}
s_branch P4_body
""")
        kernels.append((name, 320, 256, 64))
    a(".p2align 6\nP4_body:")
    vm = VM(a)
    common_prologue(a, 256, "P4_done")
    tile64_map(a)
    RX = 56; R0 = 64; NS = 7
    a(f"""
s_lshl_b32 s13, s7, 1
s_add_u32 s14, s13, s12
s_xor_b32 s15, s14, 1
s_mul_i32 s16, s4, {28*1024}
s_mul_i32 s17, s14, {112*1024}
s_add_u32 s17, s17, s16
s_add_u32 s17, s17, {HB}
s_mul_i32 s18, s15, {112*1024}
s_add_u32 s18, s18, s16
s_add_u32 s18, s18, {HB}
s_mul_i32 s21, s6, {112*2048}
s_lshl_b32 s22, s16, 1
s_add_u32 s21, s21, s22
s_add_u32 s21, s21, {WD_P}
s_lshl_b32 s22, s5, 10
s_add_u32 s23, s21, s22
s_xor_b32 s22, s22, 1024
s_add_u32 s24, s21, s22
s_lshl_b32 s14, s14, 15
s_lshl_b32 s25, s6, 12
s_lshl_b32 s26, s5, 11
s_add_u32 s25, s25, s26
s_add_u32 s25, s25, s14
s_add_u32 s26, s25, s40
s_add_u32 s27, s25, s42
s_waitcnt lgkmcnt(0)
""")
    ws_srd(a)
    seq = {}
    def loads(k):
        s = k % NS
        r = R0 + 16 * s
        vm.op(f"buffer_load_dwordx4 v[{r}:{r+3}], v3, s[8:11], s17 offen offset:{(k%4)*1024}")
        vm.op(f"buffer_load_dwordx4 v[{r+8}:{r+11}], v3, s[8:11], s23 offen offset:{(k%2)*2048}")
        vm.op(f"buffer_load_dwordx4 v[{r+4}:{r+7}], v3, s[8:11], s18 offen offset:{(k%4)*1024}")
        seq[k] = vm.op(f"buffer_load_dwordx4 v[{r+12}:{r+15}], v3, s[8:11], s24 offen offset:{(k%2)*2048}")
        if k % 4 == 3: a("s_add_u32 s17, s17, 4096\ns_add_u32 s18, s18, 4096")
        if k % 2 == 1: a("s_add_u32 s23, s23, 4096\ns_add_u32 s24, s24, 4096")
    for k in range(NS): loads(k)
    rxseq = None
    for k in range(28):
        vm.wait(seq[k])
        r = R0 + 16 * (k % NS)
        for aa in range(2):
            for b in range(2):
                s = aa * 2 + b
                c = "0" if k == 0 else f"a[{16*s}:{16*s+15}]"
                a(f"v_mfma_f32_32x32x16_bf16 a[{16*s}:{16*s+15}], v[{r+8+4*b}:{r+11+4*b}], v[{r+4*aa}:{r+4*aa+3}], {c}")
        if k + NS < 28: loads(k + NS)
        if k + NS == 28:
            vm.op(f"buffer_load_dwordx4 v[{RX}:{RX+3}], v3, s[8:11], s26 offen")
            rxseq = vm.op(f"buffer_load_dwordx4 v[{RX+4}:{RX+7}], v3, s[8:11], s26 offen offset:1024")
    reduce_tail(a, vm, RX, rxseq, "P4", 27, final_flag=43)
    a(f"""
P4_final:
s_mov_b32 s36, s34
s_mov_b32 s37, s35
s_mov_b32 s38, {2048*512*2}
s_mov_b32 s39, 0x20000
v_permlane32_swap_b32 v{RX}, v{RX+2}
v_permlane32_swap_b32 v{RX+1}, v{RX+3}
v_permlane32_swap_b32 v{RX+4}, v{RX+6}
v_permlane32_swap_b32 v{RX+5}, v{RX+7}
v_and_b32 v4, 31, v2
v_lshlrev_b32 v4, 10, v4
v_lshrrev_b32 v5, 5, v2
v_lshlrev_b32 v5, 4, v5
v_add_u32 v4, v4, v5
s_lshl_b32 s20, s6, 7
s_lshl_b32 s21, s5, 6
s_add_u32 s20, s20, s21
s_add_u32 s20, s20, s14
buffer_store_dwordx4 v[{RX}:{RX+3}], v4, s[36:39], s20 offen
buffer_store_dwordx4 v[{RX+4}:{RX+7}], v4, s[36:39], s20 offen offset:32
P4_done:
s_endpgm
""")

def main():
    a = Asm()
    gen_k0(a); gen_p1(a); gen_p2(a); gen_p3(a); gen_p4(a)
    launches = [("k0_pack_kernel", 304, 32768)]
    for l in range(2):
        launches += [(f"p1_l{l}_kernel", 256, 114688), (f"p2_l{l}_kernel", 256, 49152),
                     (f"p3_l{l}_kernel", 256, 163840), (f"p4_l{l}_kernel", 256, 49152)]
    out = "; generated by gen/gen.py\n"
    for n, g, lds in launches:
        out += f"; @launch kernel={n} grid=({g},1,1) block=(256,1,1) lds={lds}\n"
    out += '.amdgcn_target "amdgcn-amd-amdhsa--gfx950"\n.text\n'
    out += a.text()
    out += '.section .rodata,"a"\n'
    for n, vg, acc, sg in kernels:
        out += f""".p2align 6
.amdhsa_kernel {n}
  .amdhsa_next_free_vgpr {vg}
  .amdhsa_next_free_sgpr {sg}
  .amdhsa_accum_offset {acc}
  .amdhsa_group_segment_fixed_size 0
  .amdhsa_kernarg_size 80
  .amdhsa_user_sgpr_count 2
  .amdhsa_user_sgpr_kernarg_segment_ptr 1
  .amdhsa_system_sgpr_workgroup_id_x 1
.end_amdhsa_kernel
"""
    path = sys.argv[1] if len(sys.argv) > 1 else f"cdna_kernels/{NAME}.s"
    open(path, "w").write(out)

main()
```

```python
import sys, struct
sys.path.insert(0, "gen")
from asmlib import Asm

NAME = "interleave_layers__linear_attn_block__glu_gated_geglu__prompt"
def opt(name, default):
    for x in sys.argv[1:]:
        if x.startswith(f"--{name}="): return type(default)(x.split("=", 1)[1])
    return default

QKV_CB = 100 * 1024
GU_CB  = 232 * 1024
GA     = 4
WQKV_P = 0x000000
WO_P   = 0x190000
WGU_P  = 0x210000
WD_P   = 0x5B0000
X0F    = 0x800000
X1F    = 0xA00000
X2F    = 0xC00000
X3F    = 0xE00000
PQ     = 0x1000000
PQ1    = 0x1B00000
HB     = 0x1200000
ST     = [0x1900000, 0x1940000, 0x1980000, 0x19C0000]
KV     = 0x1A00000
FL     = 0x1A20000
STAMP = "--stamp" in sys.argv
STAMP_BASE = 0x1D00000
WS_BYTES = 0x1D00000 + (0x800000 if STAMP else 0)

def f32(x): return "0x%08x" % struct.unpack("<I", struct.pack("<f", x))[0]
LOG2E = 1.4426950408889634

def magic_div(d, nmax, shift=16):
    m = -(-(1 << shift) // d)
    for n in range(nmax):
        assert (n * m) >> shift == n // d, (d, n)
    return m

class VM:
    def __init__(self, a): self.a = a; self.n = 0; self.done = -1
    def op(self, text):
        self.a(text); self.n += 1; return self.n - 1
    def wait(self, seq):
        if seq <= self.done: return
        c = self.n - seq - 1
        assert c >= 0
        c = min(c, 63)
        self.a(f"s_waitcnt vmcnt({c})")
        self.done = seq
    def drained(self): self.done = self.n - 1

class LG:
    def __init__(self, a): self.a = a; self.n = 0; self.done = -1
    def op(self, text):
        self.a(text); self.n += 1; return self.n - 1
    def wait(self, seq):
        if seq <= self.done: return
        c = self.n - seq - 1
        c = min(c, 15)
        self.a(f"s_waitcnt lgkmcnt({c})")
        self.done = self.n - c - 1
    def reset(self):
        self.done = self.n - 1

kernels = []

class Stamps:
    def __init__(self, a): self.a = a; self.n = 0
    def __call__(self, tag=""):
        if not STAMP: return
        if self.n >= 14: return
        r = 64 + 2 * self.n
        self.a(f"s_waitcnt lgkmcnt(0)\ns_memtime s[{r}:{r+1}]\ns_waitcnt lgkmcnt(0)")
        self.n += 1
    def start(self):
        if not STAMP: return
        self.a("s_memrealtime s[94:95]\ns_memtime s[64:65]")
        self.n = 1
    def flush(self, kidx_sgpr):
        if not STAMP: return
        a = self.a
        a("s_waitcnt vmcnt(0) lgkmcnt(0)\ns_memrealtime s[96:97]")
        r = 64 + 2 * self.n
        a(f"s_memtime s[{r}:{r+1}]\ns_waitcnt lgkmcnt(0)")
        n = self.n + 1
        a(f"s_mov_b64 exec, -1\nv_mov_b32 v4, 0")
        for i in range(n):
            a(f"v_writelane_b32 v4, s{64+2*i}, {i}")
        a(f"v_writelane_b32 v4, s94, 30\nv_writelane_b32 v4, s96, 31")
        a(f"""
s_lshl_b32 s98, s{kidx_sgpr}, 19
s_lshl_b32 s99, s2, 10
s_add_u32 s98, s98, s99
s_lshl_b32 s99, s3, 7
s_add_u32 s98, s98, s99
s_add_u32 s98, s98, {STAMP_BASE}
v_lshlrev_b32 v5, 2, v2
v_cmp_gt_u32 vcc, 32, v2
s_and_saveexec_b64 s[100:101], vcc
buffer_store_dword v4, v5, s[8:11], s98 offen
s_mov_b64 exec, s[100:101]
""")

def header(a, name):
    a(f"""
.globl {name}
.p2align 8
.type {name},@function
{name}:
""")

def ws_srd(a, s=8):
    a(f"""
s_mov_b32 s{s}, s32
s_mov_b32 s{s+1}, s33
s_mov_b32 s{s+2}, {hex(WS_BYTES)}
s_mov_b32 s{s+3}, 0x20000
""")

def weave(main, fill, rate, start=0):
    acc = 0.0; fi = 0
    for i, m in enumerate(main):
        m()
        if i >= start:
            acc += rate
            while acc >= 1.0 and fi < len(fill):
                fill[fi](); fi += 1; acc -= 1.0
    while fi < len(fill):
        fill[fi](); fi += 1

def lines(a, text):
    out = []
    for l in text.strip("\n").split("\n"):
        l = l.strip()
        if l: out.append(lambda l=l: a(l))
    return out

def split3(a, src, t1, t2, d_or_none=None):
    pass

K0_GRID = 386
K0ST = opt('k0st', '')
def gen_k0(a):
    name = "k0_pack_kernel"
    header(a, name)
    st = Stamps(a)
    a(f"""
s_cmp_ge_u32 s2, {K0_GRID}
s_cbranch_scc1 K0_done
s_load_dwordx16 s[16:31], s[0:1], 0
s_load_dwordx2 s[32:33], s[0:1], 72
s_mov_b32 s44, 0
""")
    st.start()
    a(f"""
v_lshrrev_b32 v1, 6, v0
v_and_b32 v2, 63, v0
v_readfirstlane_b32 s3, v1
v_lshlrev_b32 v3, 4, v2
s_and_b32 s4, s3, 3
s_lshl_b32 s5, s2, 2
s_add_u32 s5, s5, s4
s_lshl_b32 s6, s4, 13
s_waitcnt lgkmcnt(0)
""")
    ws_srd(a)
    a(f"""
s_mov_b32 s15, 0x20000
s_mov_b32 s39, 0x20000
s_cmp_lt_u32 s2, 80
s_cbranch_scc1 K0_cs
s_sub_u32 s5, s5, 320
s_cmp_ge_u32 s2, 376
s_cbranch_scc1 K0_zero
s_cmp_ge_u32 s2, 312
s_cbranch_scc1 K0_x
s_cmp_ge_u32 s2, 256
s_cbranch_scc1 K0_wd
s_cmp_ge_u32 s2, 144
s_cbranch_scc1 K0_gu
s_cmp_ge_u32 s2, 128
s_cbranch_scc1 K0_wo
""")
    def fin():
        n0 = st.n
        st(); st.flush(60); st.n = n0
        a("s_endpgm")
    if STAMP: a("s_mov_b32 s60, 0")
    m24 = magic_div(24, 192)
    a(f"""
s_mul_i32 s40, s5, {m24}
s_lshr_b32 s40, s40, 16
s_mul_i32 s41, s40, 24
s_sub_u32 s41, s5, s41
s_mov_b32 s12, s18
s_mov_b32 s13, s19
s_mov_b32 s14, {512*1536*2}
s_mov_b32 s42, 3072
s_lshl_b32 s43, s41, 1
s_and_b32 s43, s43, 15
s_mul_i32 s43, s43, {QKV_CB}
s_lshr_b32 s44, s41, 3
s_add_u32 s44, s44, 2
s_cmp_ge_u32 s44, 3
s_cselect_b32 s45, 3, 0
s_sub_u32 s44, s44, s45
s_mul_i32 s46, s40, 12
s_add_u32 s46, s46, s44
s_lshl_b32 s46, s46, 10
s_add_u32 s43, s43, s46
s_add_u32 s43, s43, {WQKV_P}
s_mov_b32 s45, 3072
s_mov_b32 s46, {QKV_CB}
s_branch K0_gen
K0_wo:
s_sub_u32 s5, s5, 192
s_lshr_b32 s40, s5, 3
s_and_b32 s41, s5, 7
s_mov_b32 s12, s20
s_mov_b32 s13, s21
s_mov_b32 s14, {512*512*2}
s_mov_b32 s42, 1024
s_lshl_b32 s43, s41, 5
s_lshl_b32 s44, s40, 2
s_add_u32 s43, s43, s44
s_lshl_b32 s43, s43, 11
s_add_u32 s43, s43, {WO_P}
s_mov_b32 s45, 2048
s_mov_b32 s46, 1024
s_branch K0_gen
K0_wd:
s_sub_u32 s5, s5, 704
s_lshr_b32 s40, s5, 3
s_and_b32 s41, s5, 7
s_mov_b32 s12, s28
s_mov_b32 s13, s29
s_mov_b32 s14, {1792*512*2}
s_mov_b32 s42, 1024
s_mul_i32 s43, s41, 112
s_lshl_b32 s44, s40, 2
s_add_u32 s43, s43, s44
s_lshl_b32 s43, s43, 11
s_add_u32 s43, s43, {WD_P}
s_mov_b32 s45, 2048
s_mov_b32 s46, 1024
K0_gen:
""")
    if STAMP: a("s_mov_b32 s60, 0")
    a(f"""
s_mul_i32 s47, s40, s42
s_lshl_b32 s47, s47, 6
s_lshl_b32 s44, s41, 7
s_add_u32 s47, s47, s44
s_lshl_b32 s48, s42, 3
v_lshrrev_b32 v4, 3, v2
v_mul_lo_u32 v4, v4, s42
v_and_b32 v5, 7, v2
v_lshlrev_b32 v5, 4, v5
v_add_u32 v4, v4, v5
s_mov_b32 s49, s6
""")
    for i in range(8):
        a(f"""
s_mov_b32 m0, s49
s_add_u32 s49, s49, 1024
buffer_load_dwordx4 v4, s[12:15], s47 offen lds
s_add_u32 s47, s47, s48
""")
    a(f"""
v_lshrrev_b32 v5, 5, v2
v_lshlrev_b32 v5, 2, v5
v_bfe_u32 v6, v2, 2, 2
v_add_u32 v5, v5, v6
v_lshlrev_b32 v5, 7, v5
v_bfe_u32 v6, v2, 4, 1
v_lshlrev_b32 v6, 5, v6
v_add_u32 v5, v5, v6
v_and_b32 v6, 3, v2
v_lshlrev_b32 v6, 3, v6
v_add_u32 v5, v5, v6
v_add_u32 v5, s6, v5
s_waitcnt vmcnt(0)
""")
    for ksl in range(4):
        for ntl in range(2):
            d = 16 + (ksl * 2 + ntl) * 4
            off = ksl * 2048 + ntl * 64
            a(f"""
ds_read_b64_tr_b16 v[{d}:{d+1}], v5 offset:{off}
ds_read_b64_tr_b16 v[{d+2}:{d+3}], v5 offset:{off+1024}
""")
    a("s_waitcnt lgkmcnt(0)")
    for ksl in range(4):
        d = 16 + (ksl * 2) * 4
        a(f"""
s_add_u32 s44, s43, s46
buffer_store_dwordx4 v[{d}:{d+3}], v3, s[8:11], s43 offen {K0ST}
buffer_store_dwordx4 v[{d+4}:{d+7}], v3, s[8:11], s44 offen {K0ST}
s_add_u32 s43, s43, s45
""")
    fin()
    m28 = magic_div(28, 448); m7 = magic_div(7, 112)
    a(f"""
K0_gu:
s_sub_u32 s5, s5, 256
s_mul_i32 s40, s5, {m28}
s_lshr_b32 s40, s40, 16
s_mul_i32 s41, s40, 28
s_sub_u32 s41, s5, s41
s_mov_b32 s12, s24
s_mov_b32 s13, s25
s_mov_b32 s14, {512*1792*2}
s_mov_b32 s36, s26
s_mov_b32 s37, s27
s_mov_b32 s38, {512*1792*2}
s_mul_i32 s47, s40, {32*3584}
s_lshl_b32 s44, s41, 7
s_add_u32 s47, s47, s44
v_lshrrev_b32 v4, 3, v2
v_mul_u32_u24 v4, 3584, v4
v_and_b32 v5, 7, v2
v_lshlrev_b32 v5, 4, v5
v_add_u32 v4, v4, v5
s_mov_b32 s49, s6
s_add_u32 s50, s6, 4096
""")
    if STAMP: a("s_mov_b32 s60, 0")
    for i in range(4):
        a(f"""
s_mov_b32 m0, s49
s_add_u32 s49, s49, 1024
buffer_load_dwordx4 v4, s[12:15], s47 offen lds
s_mov_b32 m0, s50
s_add_u32 s50, s50, 1024
buffer_load_dwordx4 v4, s[36:39], s47 offen lds
s_add_u32 s47, s47, {8*3584}
""")
    a(f"""
v_lshrrev_b32 v5, 5, v2
v_lshlrev_b32 v5, 2, v5
v_bfe_u32 v6, v2, 2, 2
v_add_u32 v5, v5, v6
v_bfe_u32 v6, v2, 4, 1
v_lshlrev_b32 v6, 5, v6
v_add_u32 v5, v5, v6
v_lshlrev_b32 v5, 7, v5
v_and_b32 v6, 3, v2
v_lshlrev_b32 v6, 3, v6
v_add_u32 v5, v5, v6
v_add_u32 v5, s6, v5
s_lshl_b32 s42, s40, 1
""")
    for ntl in range(4):
        a(f"""
s_lshl_b32 s43, s41, 2
s_add_u32 s43, s43, {ntl}
s_mul_i32 s44, s43, {m7}
s_lshr_b32 s44, s44, 16
s_mul_i32 s45, s44, 7
s_sub_u32 s45, s43, s45
s_mul_i32 s46, s42, {GA}
s_add_u32 s46, s46, s45
s_mul_i32 s47, s45, 33
s_add_u32 s47, s47, s42
s_cmp_lt_u32 s45, {GA}
s_cselect_b32 s46, s46, s47
s_cselect_b32 s47, {GA}, 1
s_lshl_b32 s47, s47, 10
s_lshl_b32 s46, s46, 10
s_mul_i32 s44, s44, {GU_CB}
s_add_u32 s46, s46, s44
s_add_u32 s{52+2*ntl}, s46, {WGU_P}
s_add_u32 s{53+2*ntl}, s{52+2*ntl}, s47
""")
    a("s_waitcnt vmcnt(0)")
    for ntl in range(4):
        for ksl in range(2):
            d = 16 + (ntl * 2 + ksl) * 4
            off = ksl * 2048 + ntl * 32
            a(f"""
ds_read_b64_tr_b16 v[{d}:{d+1}], v5 offset:{off}
ds_read_b64_tr_b16 v[{d+2}:{d+3}], v5 offset:{off+1024}
""")
    a("s_waitcnt lgkmcnt(0)")
    for ntl in range(4):
        d = 16 + (ntl * 2) * 4
        a(f"""
buffer_store_dwordx4 v[{d}:{d+3}], v3, s[8:11], s{52+2*ntl} offen {K0ST}
buffer_store_dwordx4 v[{d+4}:{d+7}], v3, s[8:11], s{53+2*ntl} offen {K0ST}
""")
    fin()
    a(f"""
K0_x:
s_sub_u32 s5, s5, 928
s_lshr_b32 s40, s5, 2
s_and_b32 s41, s5, 3
s_mov_b32 s12, s16
s_mov_b32 s13, s17
s_mov_b32 s14, {2048*512*2}
s_lshl_b32 s47, s40, 15
s_lshl_b32 s44, s41, 8
s_add_u32 s47, s47, s44
v_and_b32 v4, 31, v2
v_lshlrev_b32 v4, 10, v4
v_lshrrev_b32 v5, 5, v2
v_lshlrev_b32 v5, 4, v5
v_add_u32 v4, v4, v5
s_lshl_b32 s43, s5, 13
s_add_u32 s43, s43, {X0F}
s_add_u32 s44, s43, 4096
s_lshl_b32 s45, s5, 10
s_add_u32 s45, s45, {ST[0]}
v_mov_b32 v6, 0x3f803f80
""")
    if STAMP: a("s_mov_b32 s60, 0")
    for ksl in range(8):
        d = 16 + ksl * 4
        a(f"buffer_load_dwordx4 v[{d}:{d+3}], v4, s[12:15], s47 offen offset:{ksl*32}")
    for i in range(8): a(f"v_mov_b32 v{48+i}, 0")
    for ksl in range(8):
        d = 16 + ksl * 4
        sb = "s43" if ksl < 4 else "s44"
        S = 48 + (ksl // 2) * 2
        a(f"s_waitcnt vmcnt(7)")
        for j in range(4):
            a(f"v_dot2_f32_bf16 v{S}, v{d+j}, v6, v{S}\nv_dot2_f32_bf16 v{S+1}, v{d+j}, v{d+j}, v{S+1}")
        a(f"""
v_permlane32_swap_b32 v{d}, v{d+2}
v_permlane32_swap_b32 v{d+1}, v{d+3}
buffer_store_dwordx4 v[{d}:{d+3}], v3, s[8:11], {sb} offen offset:{(ksl%4)*1024} {K0ST}
""")
    for i in range(8): a(f"v_mov_b32 v{56+i}, v{48+i}")
    for i in range(8): a(f"v_permlane32_swap_b32 v{48+i}, v{56+i}")
    for i in range(8): a(f"v_add_f32 v{48+i}, v{48+i}, v{56+i}")
    a(f"""
s_mov_b64 exec, 0xffffffff
buffer_store_dwordx4 v[48:51], v3, s[8:11], s45 offen {K0ST}
buffer_store_dwordx4 v[52:55], v3, s[8:11], s45 offen offset:512 {K0ST}
""")
    fin()
    a(f"""
K0_zero:
s_sub_u32 s5, s2, 376
s_lshl_b32 s43, s5, 14
s_add_u32 s43, s43, {KV}
v_lshlrev_b32 v4, 4, v0
v_mov_b32 v16, 0
v_mov_b32 v17, 0
v_mov_b32 v18, 0
v_mov_b32 v19, 0
""")
    for i in range(4):
        a(f"""
buffer_store_dwordx4 v[16:19], v4, s[8:11], s43 offen {K0ST}
s_add_u32 s43, s43, 4096
""")
    a("s_endpgm")
    a(f"""
K0_cs:
s_cmp_lt_u32 s2, 24
s_cbranch_scc1 K0_cs_qkv
s_cmp_lt_u32 s2, 52
s_cselect_b32 s12, s24, s26
s_cselect_b32 s13, s25, s27
s_cselect_b32 s40, 24, 52
s_cselect_b32 s45, 0, 256
s_sub_u32 s41, s2, s40
s_mov_b32 s14, {512*1792*2}
s_mov_b32 s42, 3584
v_lshrrev_b32 v40, 4, v2
s_lshl_b32 s43, s41, 2
v_add_u32 v40, s43, v40
v_mul_u32_u24 v41, {m7}, v40
v_lshrrev_b32 v41, 16, v41
v_mul_u32_u24 v42, 7, v41
v_sub_u32 v42, v40, v42
v_add_u32 v43, {32*GA}, v42
v_mul_u32_u24 v44, 33, v42
v_add_u32 v44, 32, v44
v_cmp_gt_u32 vcc, {GA}, v42
v_cndmask_b32 v43, v44, v43, vcc
v_lshlrev_b32 v43, 10, v43
s_mov_b32 s46, {GU_CB}
v_mul_lo_u32 v41, v41, s46
v_add_u32 v43, v43, v41
v_and_b32 v40, 15, v2
v_lshlrev_b32 v40, 4, v40
v_add_u32 v43, v43, v40
v_add_u32 v43, s45, v43
v_add_u32 v43, {WGU_P}, v43
s_branch K0_cs_go
K0_cs_qkv:
s_mov_b32 s12, s18
s_mov_b32 s13, s19
s_mov_b32 s14, {512*1536*2}
s_mov_b32 s42, 3072
s_mov_b32 s41, s2
s_lshr_b32 s44, s41, 3
s_add_u32 s45, s44, 95
s_cmp_eq_u32 s44, 0
s_cselect_b32 s45, 98, s45
s_lshl_b32 s45, s45, 10
s_lshl_b32 s43, s41, 1
s_and_b32 s43, s43, 15
v_lshrrev_b32 v40, 5, v2
v_add_u32 v40, s43, v40
s_mov_b32 s46, {QKV_CB}
v_mul_lo_u32 v41, v40, s46
v_and_b32 v40, 31, v2
v_lshlrev_b32 v40, 4, v40
v_add_u32 v43, v41, v40
v_add_u32 v43, s45, v43
K0_cs_go:
s_mul_i32 s47, s4, s42
s_lshl_b32 s47, s47, 7
s_lshl_b32 s44, s41, 7
s_add_u32 s47, s47, s44
s_lshl_b32 s48, s42, 3
v_lshrrev_b32 v4, 3, v2
v_mul_lo_u32 v4, v4, s42
v_and_b32 v5, 7, v2
v_lshlrev_b32 v5, 4, v5
v_add_u32 v4, v4, v5
v_mov_b32 v6, 0x00003f80
v_mov_b32 v7, 0x3f800000
""")
    if STAMP: a("s_mov_b32 s60, 0")
    L = 48
    for i in range(16):
        a(f"buffer_load_dwordx4 v[{L+4*i}:{L+4*i+3}], v4, s[12:15], s47 offen\ns_add_u32 s47, s47, s48")
    for i in range(8): a(f"v_mov_b32 v{8+i}, 0")
    for i in range(16):
        a(f"s_waitcnt vmcnt({15-i})")
        for j in range(4):
            a(f"v_dot2_f32_bf16 v{8+2*j}, v{L+4*i+j}, v6, v{8+2*j}\nv_dot2_f32_bf16 v{9+2*j}, v{L+4*i+j}, v7, v{9+2*j}")
    a(f"""
v_lshlrev_b32 v5, 5, v0
ds_write_b128 v5, v[8:11]
ds_write_b128 v5, v[12:15] offset:16
s_waitcnt lgkmcnt(0)
s_barrier
s_cmp_lg_u32 s4, 0
s_cbranch_scc1 K0_done
v_lshlrev_b32 v5, 2, v2
""")
    for i in range(32):
        a(f"ds_read_b32 v{L+i}, v5 offset:{i*256}")
    a("s_waitcnt lgkmcnt(0)")
    for st_ in (16, 8, 4, 2, 1):
        for i in range(st_):
            a(f"v_add_f32 v{L+i}, v{L+i}, v{L+i+st_}")
    a(f"""
v_cvt_pk_bf16_f32 v8, v{L}, v{L}
v_and_b32 v8, 0xffff0000, v8
v_sub_f32 v9, v{L}, v8
v_cvt_pk_bf16_f32 v10, v9, v9
v_and_b32 v10, 0xffff0000, v10
v_sub_f32 v11, v9, v10
v_cvt_pk_bf16_f32 v16, v{L}, v9
v_cvt_pk_bf16_f32 v17, v11, v{L}
v_cvt_pk_bf16_f32 v18, v9, v{L}
v_mov_b32 v19, 0
v_mov_b32 v20, 0
v_mov_b32 v21, 0
v_mov_b32 v22, 0
v_mov_b32 v23, 0
buffer_store_dwordx4 v[16:19], v43, s[8:11], 0 offen {K0ST}
buffer_store_dwordx4 v[20:23], v43, s[8:11], 0 offen offset:512 {K0ST}
""")
    fin()
    a("""
K0_done:
s_endpgm
""")
    kernels.append((name, 128, 128, 102))

def common_prologue(a, nwg, done):
    a(f"""
s_cmp_ge_u32 s2, {nwg}
s_cbranch_scc1 {done}
s_load_dwordx2 s[32:33], s[0:1], 72
s_load_dwordx2 s[34:35], s[0:1], 56
v_lshrrev_b32 v1, 6, v0
v_and_b32 v2, 63, v0
v_readfirstlane_b32 s3, v1
v_lshlrev_b32 v3, 4, v2
s_and_b32 s4, s3, 3
""")

def stats_load(a, vm, SR, vaddr, sOff):
    for i in range(4):
        last = vm.op(f"buffer_load_dwordx4 v[{SR+4*i}:{SR+4*i+3}], v{vaddr}, s[8:11], s{sOff} offen offset:{i*512}")
    return last

def stats_finish(SR, MF, RS, VE):
    t = ""
    for st_ in (8, 4, 2):
        for i in range(st_):
            t += f"v_add_f32 v{SR+i}, v{SR+i}, v{SR+i+st_}\n"
    t += f"""
v_mov_b32 v{SR+2}, v{SR}
v_mov_b32 v{SR+3}, v{SR+1}
v_permlane32_swap_b32 v{SR}, v{SR+2}
v_permlane32_swap_b32 v{SR+1}, v{SR+3}
v_add_f32 v{SR}, v{SR}, v{SR+2}
v_add_f32 v{SR+1}, v{SR+1}, v{SR+3}
v_mul_f32 v{SR}, {f32(-1.0/512)}, v{SR}
v_mul_f32 v{SR+1}, {f32(1.0/512)}, v{SR+1}
v_fma_f32 v{SR+1}, -v{SR}, v{SR}, v{SR+1}
v_max_f32 v{SR+1}, 0, v{SR+1}
v_add_f32 v{VE}, {f32(1e-5)}, v{SR+1}
v_rsq_f32 v{RS}, v{VE}
v_cvt_pk_bf16_f32 v{MF}, v{SR}, v{SR}
v_and_b32 v{SR+2}, 0xffff0000, v{MF}
v_sub_f32 v{SR+2}, v{SR}, v{SR+2}
v_cvt_pk_bf16_f32 v{MF+1}, v{SR}, v{SR+2}
v_and_b32 v{SR+3}, 0xffff0000, v{MF+1}
v_sub_f32 v{SR+3}, v{SR+2}, v{SR+3}
v_cvt_pk_bf16_f32 v{MF+2}, v{SR+2}, v{SR+3}
v_mov_b32 v{MF+3}, 0
"""
    return t

def map_rc(a, rx, cx):
    rper = 16 // rx; cper = 16 // cx
    lc = cx.bit_length() - 1; lcp = cper.bit_length() - 1; lrp = rper.bit_length() - 1
    a(f"""
s_and_b32 s5, s2, 7
s_lshr_b32 s6, s2, 3
s_lshr_b32 s7, s5, {lc}
s_lshl_b32 s7, s7, {lrp}
s_lshr_b32 s12, s6, {lcp}
s_add_u32 s7, s7, s12
s_and_b32 s5, s5, {cx-1}
s_lshl_b32 s5, s5, {lcp}
s_and_b32 s6, s6, {cper-1}
s_add_u32 s6, s6, s5
""")

def prefetch_items(a, vm, base, nload, grp_shift_mask=None, grp_bytes=0, dst=240):
    it = []
    def pre():
        a(f"""
s_lshr_b32 s46, s2, 3
s_lshl_b32 s46, s46, 2
s_add_u32 s46, s46, s4
s_mul_i32 s46, s46, {nload*1024}
s_add_u32 s46, s46, {base}
""")
        if grp_shift_mask is not None:
            a(f"s_and_b32 s47, s2, {grp_shift_mask}\ns_mul_i32 s47, s47, {grp_bytes}\ns_add_u32 s46, s46, s47")
    def ld(i):
        if i == 0: pre()
        vm.op(f"buffer_load_dwordx4 v[{dst}:{dst+3}], v3, s[8:11], s46 offen offset:{(i%4)*1024}")
        if i % 4 == 3: a("s_add_u32 s46, s46, 4096")
    if opt("pf", 1):
        for i in range(nload): it.append(lambda i=i: ld(i))
    return it
def pf_p1(a, vm, dst):
    cx = opt("p1cx", 2); return prefetch_items(a, vm, WQKV_P, -(-(16 // cx) * 100 // 128), cx - 1, (16 // cx) * QKV_CB, dst)
def pf_p2(a, vm, dst):
    cx = opt("p2cx", 1); return prefetch_items(a, vm, WO_P, 4 // cx, cx - 1, 524288 // cx, dst)
def pf_p3(a, vm, dst):
    cx = opt("p3cx", 4); return prefetch_items(a, vm, WGU_P, -(-(16 // cx) * 232 // 128), cx - 1, (16 // cx) * GU_CB, dst)
def pf_p4(a, vm, dst):
    cx = opt("p4cx", 1); return prefetch_items(a, vm, WD_P, 14 // cx, cx - 1, 1835008 // cx, dst)

def p1_compute(a, st, ARING, NAR, SCR, RED, sPQ, fused):
    vm = VM(a); lg = LG(a)
    AK = 64; AV = 80; AQ = 96; B = 16; NB = 6
    SR = 112; R16 = 112; MF = 8; RS = 12; VE = 13; T = 40
    a(f"""
s_lshl_b32 s19, s12, 12
s_add_u32 s19, s19, s42
v_and_b32 v4, 31, v2
v_lshlrev_b32 v4, 4, v4
v_lshrrev_b32 v5, 5, v2
v_lshlrev_b32 v5, 11, v5
v_add_u32 v4, v4, v5
""")
    def stats_issue():
        for i in range(4):
            misc["s"] = vm.op(f"buffer_load_dwordx4 v[{SR+4*i}:{SR+4*i+3}], v4, s[8:11], s19 offen offset:{i*512} sc1")
    misc = {}
    if not fused: stats_issue()
    a(f"""
v_add_u32 v14, 0x10000, v3
s_lshl_b32 s18, s4, 11
s_add_u32 s18, s18, {ARING}
v_add_u32 v1, s18, v3
s_lshl_b32 s18, s4, 7
s_add_u32 s18, s18, {SCR}
v_and_b32 v5, 31, v2
v_lshlrev_b32 v5, 2, v5
v_add_u32 v5, s18, v5
v_lshrrev_b32 v6, 5, v2
v_lshlrev_b32 v6, 4, v6
v_add_u32 v6, s18, v6
""")
    def stats_done():
        vm.wait(misc["s"])
        a(stats_finish(SR, MF, RS, VE))
        w0 = lg.op(f"ds_write_b32 v5, v{RS}")
        lg.wait(w0)
        for g4 in range(4):
            lg.op(f"ds_read_b128 v[{R16+4*g4}:{R16+4*g4+3}], v6 offset:{g4*32}")
        a(f"v_mul_f32 v15, {f32(LOG2E)}, v{RS}")
        a(f"v_and_b32 v4, 16, v2\nv_cmp_eq_u32 vcc, 0, v4\nv_mov_b32 v7, 0x3f803f80")
    if not fused: stats_done()
    st()
    QL = opt("p1ql", 12)
    order = [] if fused else [(32, 0), (32, 1), (32, 2)]
    for ks in range(32 + QL):
        if ks < 32: order += [(ks, 0), (ks, 1)]
        if ks >= QL: order += [(ks - QL, 2)]
        if fused and ks == 24: order += [(32, 0), (32, 1), (32, 2)]
    firstuse = {}
    for n_, (ks_, j_) in enumerate(order): firstuse.setdefault(j_, n_)
    N = len(order)
    nkv = max(i for i, o in enumerate(order) if o[1] < 2)
    rseq = {}
    def bread(n):
        if n >= N: return
        ks, j = order[n]
        r = B + (n % NB) * 4
        o = (ks * 3 + j) * 1024
        base = 3 if o < 65536 else 14
        rseq[n] = lg.op(f"ds_read_b128 v[{r}:{r+3}], v{base} offset:{o % 65536}")
    aseq = {}
    def mf(n):
        ks, j = order[n]
        lg.wait(max(rseq[n], aseq.get(ks, -1)))
        r = B + (n % NB) * 4
        ar = f"a[{4*ks}:{4*ks+3}]" if ks < 32 else f"v[{MF}:{MF+3}]"
        acc = (AK, AV, AQ)[j]
        c = "0" if n == firstuse[j] else f"v[{acc}:{acc+15}]"
        if j < 2: a(f"v_mfma_f32_32x32x16_bf16 v[{acc}:{acc+15}], {ar}, v[{r}:{r+3}], {c}")
        else:     a(f"v_mfma_f32_32x32x16_bf16 v[{acc}:{acc+15}], v[{r}:{r+3}], {ar}, {c}")
    def sync_group(g):
        if g >= 1: lg.wait(aseq[2 * g - 1])
        a("s_barrier")
        for k in (2 * g, 2 * g + 1):
            aseq[k] = lg.op(f"ds_read_b128 a[{4*k}:{4*k+3}], v1 offset:{(g % NAR) * 8192 + (k % 2) * 1024}")
    RA = 3
    first = {}
    for n, (ks, j) in enumerate(order):
        if ks < 32 and j == 0 and ks % 2 == 0: first[ks // 2] = n
    syncat = {first[g] - 2: g for g in range(1, 16)}
    sync_group(0)
    if fused: stats_issue()
    for n in range(RA): bread(n)
    qrest = []
    for n in range(N):
        def item(n=n):
            if n in syncat: sync_group(syncat[n])
            mf(n); bread(n + RA)
            if fused and n == 30: stats_done()
        if n <= nkv: item()
        else: qrest.append(item)
    st()
    def group(fn, rs):
        blk = [lines(a, fn(r)) for r in rs]
        for tup in zip(*blk):
            for x in tup: x()
    def kphi(r):
        k = AK + r; t = T + (r % 4)
        return f"""
v_mul_f32 v{k}, v{k}, v{R16+r}
v_mul_f32 v{t}, {f32(LOG2E)}, v{k}
v_min_f32 v{t}, 0, v{t}
v_exp_f32 v{t}, v{t}
v_max_f32 v{k}, 0, v{k}
v_add_f32 v{k}, {f32(1e-6)}, v{k}
v_add_f32 v{k}, v{k}, v{t}
"""
    def qphi(r):
        q = AQ + r; t = T + (r % 4)
        return f"""
v_mul_f32 v{t}, v15, v{q}
v_min_f32 v{t}, 0, v{t}
v_exp_f32 v{t}, v{t}
v_max_f32 v{q}, 0, v{q}
v_add_f32 v{t}, {f32(1e-6)}, v{t}
v_fma_f32 v{q}, v{q}, v{RS}, v{t}
"""
    D1 = 112; D2 = 48
    ep = []
    def groupl(fn, rs):
        blk = [lines(a, fn(r)) for r in rs]
        out = []
        for tup in zip(*blk): out += list(tup)
        return out
    for q4 in range(4):
        ep += groupl(kphi, list(range(4 * q4, 4 * q4 + 4)))
        for r in range(4 * q4, 4 * q4 + 4): ep += lines(a, f"v_mul_f32 v{AV+r}, v{AV+r}, v{R16+r}")
    for i in range(8):
        ep += lines(a, f"v_cvt_pk_bf16_f32 v{AK+i}, v{AK+2*i}, v{AK+2*i+1}\nv_cvt_pk_bf16_f32 v{AV+i}, v{AV+2*i}, v{AV+2*i+1}")
    for i in range(8):
        ep += lines(a, f"v_cndmask_b32 v{AK+8+i}, v7, v{AV+i}, vcc\nv_cndmask_b32 v{AV+8+i}, v{AV+i}, v7, vcc")
    weave(qrest, ep, len(ep) / max(1, len(qrest) - 2), start=2)
    KF = AK; B1 = AK + 8; B2 = AV + 8
    a(f"""
v_mfma_f32_32x32x16_bf16 v[{D1}:{D1+15}], v[{KF}:{KF+3}], v[{B1}:{B1+3}], 0
v_mfma_f32_32x32x16_bf16 v[{D2}:{D2+15}], v[{KF}:{KF+3}], v[{B2}:{B2+3}], 0
v_mfma_f32_32x32x16_bf16 v[{D1}:{D1+15}], v[{KF+4}:{KF+7}], v[{B1+4}:{B1+7}], v[{D1}:{D1+15}]
v_mfma_f32_32x32x16_bf16 v[{D2}:{D2+15}], v[{KF+4}:{KF+7}], v[{B2+4}:{B2+7}], v[{D2}:{D2+15}]
""")
    st()
    a(f"""
s_lshl_b32 s18, s4, 12
s_add_u32 s18, s18, {RED}
v_add_u32 v44, s18, v3
s_lshl_b32 s18, s4, 10
s_add_u32 s18, s18, {RED}
v_lshlrev_b32 v46, 2, v2
v_add_u32 v45, s18, v46
""")
    group(qphi, [0, 1, 2, 3])
    a(f"""
ds_write_b128 v44, v[{D1}:{D1+3}]
ds_write_b128 v44, v[{D1+4}:{D1+7}] offset:1024
ds_write_b128 v44, v[{D2+8}:{D2+11}] offset:2048
ds_write_b128 v44, v[{D2+12}:{D2+15}] offset:3072
""")
    group(qphi, [4, 5, 6, 7])
    a("s_waitcnt lgkmcnt(0)\ns_barrier")
    for i in range(4):
        for w in range(4):
            a(f"ds_read_b32 v{16+i*4+w}, v45 offset:{w*4096+i*256}")
    a(f"""
s_lshl_b32 s18, s6, 12
s_add_u32 s18, s18, s41
s_lshl_b32 s19, s4, 10
s_add_u32 s18, s18, s19
""")
    group(qphi, [8, 9, 10, 11])
    a("s_waitcnt lgkmcnt(0)")
    for i in range(4):
        r = 16 + i * 4
        a(f"v_add_f32 v{r}, v{r}, v{r+1}\nv_add_f32 v{r+2}, v{r+2}, v{r+3}")
    for i in range(4):
        r = 16 + i * 4
        a(f"v_add_f32 v{r}, v{r}, v{r+2}")
    for i in range(4):
        r = 16 + i * 4
        a(f"buffer_atomic_add_f32 v{r}, v46, s[8:11], s18 offen offset:{i*256}")
    group(qphi, [12, 13, 14, 15])
    QF = 32
    for i in range(8):
        a(f"v_cvt_pk_bf16_f32 v{QF+i}, v{AQ+2*i}, v{AQ+2*i+1}")
    a(f"""
s_lshl_b32 s17, s6, 11
s_add_u32 s17, s17, s13
s_add_u32 s17, s17, {sPQ}
buffer_store_dwordx4 v[{QF}:{QF+3}], v3, s[8:11], s17 offen {opt('xst','')}
buffer_store_dwordx4 v[{QF+4}:{QF+7}], v3, s[8:11], s17 offen offset:1024 {opt('xst','')}
""")
    st()
    st.flush(44)
    a("s_endpgm")

def gen_p1(a):
    for layer in range(1):
        name = f"p1_l{layer}_kernel"
        header(a, name)
        a(f"""
s_mov_b32 s40, {X0F if layer == 0 else X2F}
s_mov_b32 s41, {KV + layer * 65536}
s_mov_b32 s42, {ST[0] if layer == 0 else ST[2]}
s_mov_b32 s44, {1+4*layer}
s_branch P1_body
""")
        kernels.append((name, 256, 128, 102))
    a(".p2align 6\nP1_body:")
    common_prologue(a, 256, "P1_done")
    st = Stamps(a); st.start()
    map_rc(a, opt("p1rx", 4), opt("p1cx", 2))
    ARING = 100 * 1024; NAR = 7
    a(f"""
s_lshl_b32 s12, s7, 2
s_add_u32 s12, s12, s4
s_lshl_b32 s13, s12, 15
s_waitcnt lgkmcnt(0)
""")
    ws_srd(a)
    a("s_cmp_lt_u32 s3, 4\ns_cbranch_scc1 P1_comp")
    vm = VM(a)
    a(f"""
s_add_u32 s14, s13, s40
s_mul_i32 s15, s6, {QKV_CB}
s_mul_i32 s16, s4, {25*1024}
s_add_u32 s17, s15, s16
s_lshl_b32 s18, s4, 11
s_add_u32 s18, s18, {ARING}
""")
    for i in range(25):
        if i % 4 == 0: a("s_mov_b32 m0, s16")
        vm.op(f"buffer_load_dwordx4 v3, s[8:11], s17 offen offset:{(i%4)*1024} lds")
        if i % 4 == 3: a("s_add_u32 s16, s16, 4096\ns_add_u32 s17, s17, 4096")
    D = opt("p1d", 6)
    gs = {}
    for g in range(16 + D - 1):
        if g < 16:
            a(f"s_add_u32 s19, s18, {(g % NAR) * 8192}\ns_mov_b32 m0, s19")
            vm.op(f"buffer_load_dwordx4 v3, s[8:11], s14 offen lds")
            gs[g] = vm.op(f"buffer_load_dwordx4 v3, s[8:11], s14 offen offset:1024 lds")
            a("s_add_u32 s14, s14, 2048")
        if g == 16:
            pass
        if g == 0: st()
        if g >= D - 1:
            vm.wait(gs[g - D + 1])
            if (g - D + 1) in (0, 1, 4, 8, 12, 15): st()
            a("s_barrier")
    a("s_barrier")
    st(); st.flush(44); st.n = 1
    a("s_endpgm")
    a("P1_comp:")
    p1_compute(a, st, ARING, NAR, ARING + NAR * 8192, ARING + 2 * 8192, PQ, False)
    a("P1_done:\ns_endpgm")
P1_LDS = 100 * 1024 + 7 * 8192 + 512

def gelu_items(a, ACC, T, KA, KB, VE):
    it = []
    for j0 in range(0, 8, 4):
        blk = []
        for j in range(j0, j0 + 4):
            g = ACC + j; u = ACC + 8 + j; t = T + (j % 4)
            blk.append(lines(a, f"""
v_mul_f32 v{t}, v{g}, v{g}
v_mul_f32 v{u}, v{g}, v{u}
v_fma_f32 v{t}, v{t}, v{KA}, v{KB}
v_mul_f32 v{g}, v{t}, v{g}
v_exp_f32 v{g}, v{g}
v_fma_f32 v{g}, v{g}, v{VE}, v{VE}
v_rcp_f32 v{g}, v{g}
v_mul_f32 v{g}, v{g}, v{u}
"""))
        for tup in zip(*blk): it += list(tup)
        it += lines(a, f"v_cvt_pk_bf16_f32 v{ACC+8+j0//2}, v{ACC+j0}, v{ACC+j0+1}\nv_cvt_pk_bf16_f32 v{ACC+8+j0//2+1}, v{ACC+j0+2}, v{ACC+j0+3}")
    return it

def main():
    a = Asm()
    gen_k0(a); gen_p1(a); gen_fk(a)
    launches = [("k0_pack_kernel", K0_GRID, 32768)]
    launches += [("p1_l0_kernel", 256, P1_LDS), ("fk_l0_kernel", 256, 163840), ("fk_l1_kernel", 256, 163840)]
    out = "; generated by gen/gen5.py\n"
    for n, g, lds in launches:
        bs = 512 if n.startswith(("p1", "fk")) else 256
        out += f"; @launch kernel={n} grid=({g},1,1) block=({bs},1,1) lds={lds}\n"
    out += '.amdgcn_target "amdgcn-amd-amdhsa--gfx950"\n.text\n'
    out += a.text()
    out += '.section .rodata,"a"\n'
    for n, vg, acc, sg in kernels:
        out += f""".p2align 6
.amdhsa_kernel {n}
  .amdhsa_next_free_vgpr {vg}
  .amdhsa_next_free_sgpr {sg}
  .amdhsa_accum_offset {acc}
  .amdhsa_group_segment_fixed_size 0
  .amdhsa_kernarg_size 80
  .amdhsa_user_sgpr_count 2
  .amdhsa_user_sgpr_kernarg_segment_ptr 1
  .amdhsa_system_sgpr_workgroup_id_x 1
.end_amdhsa_kernel
"""
    args = [x for x in sys.argv[1:] if not x.startswith("--")]
    path = args[0] if args else f"cdna_kernels/{NAME}.s"
    open(path, "w").write(out)

main()
```
